```python
import torch

def _softmax(x, axis=-1):
    return torch.softmax(x, dim=axis)
def _gelu(x):
    return torch.nn.functional.gelu(x, approximate="tanh")
def _silu(x):
    return torch.nn.functional.silu(x)
def _sigmoid(x):
    return torch.sigmoid(x)
def _layernorm(x, axis=-1, eps=1e-5):
    m = x.mean(dim=axis, keepdim=True)
    v = x.var(dim=axis, keepdim=True, unbiased=False)
    return (x - m) / torch.sqrt(v + eps)
def _scatter_add(tgt, idx, src, axis=0):
    return tgt.clone().index_add_(axis, idx, src)
def _segment_sum(src, seg, n):
    out = torch.zeros((n,) + src.shape[1:], dtype=src.dtype)
    return out.index_add_(0, seg, src)
def _pad(x, pw):
    flat = tuple(v for pair in reversed(pw) for v in pair)
    return torch.nn.functional.pad(x, flat)

kernel_name = 'standalone__mha_block_cached__near_ridge'

def setup_inputs():

    _w = (lambda a: (lambda t: t.to(torch.bfloat16) if t.is_floating_point() else t)(torch.as_tensor(a)))
    B, Sq, D = 32, 192, 448
    H, Sk, Dh = 16, 512, 256
    return {
        "x": _w((lambda *s: torch.randn(*s, dtype=torch.bfloat16) * 0.8)(B, Sq, D)),
        "k_cache": _w((lambda *s: torch.randn(*s, dtype=torch.bfloat16) * 0.8)(B, H, Sk, Dh)),
        "v_cache": _w((lambda *s: torch.randn(*s, dtype=torch.bfloat16) * 0.05)(B, H, Sk, Dh)),
        "wq": _w((lambda *s: torch.randn(*s, dtype=torch.bfloat16) * 0.8)(D, H * Dh) * (D ** -0.5)),
        "wo": _w((lambda *s: torch.randn(*s, dtype=torch.bfloat16) * 0.05)(H * Dh, D) * ((H * Dh) ** -0.5)),
    }

def reference(x, k_cache, v_cache, wq, wo):
    B, Sq, D = x.shape
    H, Dh = 16, 256
    q = (lambda x, *d: x.permute(*d))((x @ wq).reshape(B, Sq, H, Dh), 0, 2, 1, 3)
    scores = torch.einsum("bhqd,bhkd->bhqk", q, k_cache) * (Dh ** -0.5)
    p = _softmax(scores, axis=-1)
    o = torch.einsum("bhqk,bhkd->bhqd", p, v_cache)
    return (lambda x, *d: x.permute(*d))(o, 0, 2, 1, 3).reshape(B, Sq, H * Dh) @ wo
```

```python
import re

TRANS = ("v_exp_f32", "v_rcp_f32", "v_log_f32", "v_rsq_f32", "v_sqrt_f32")


def regs_of(op):
    op = op.strip()
    neg = op.lstrip("-")
    if neg.startswith("abs(") or neg.startswith("|"):
        neg = neg.strip("|").replace("abs(", "").rstrip(")")
    m = re.fullmatch(r"([vas])(\d+)", neg)
    if m:
        return {(m.group(1), int(m.group(2)))}
    m = re.fullmatch(r"([vas])\[(\d+):(\d+)\]", neg)
    if m:
        return {(m.group(1), i) for i in range(int(m.group(2)), int(m.group(3)) + 1)}
    if neg in ("vcc", "m0", "exec", "scc"):
        return {(neg, 0)}
    return set()


class I:
    def __init__(self, text, cost=None, vm_tag=None, vm_need=None, lg_tag=None, lg_need=None, mark=None):
        self.text = text
        self.vm_tag = vm_tag
        self.vm_need = vm_need
        self.lg_tag = lg_tag
        self.lg_need = lg_need
        self.mark = mark
        self.n = None
        if mark is not None:
            self.kind = "mark"
            self.cost = 0
            self.rd = self.wr = self.cs = set()
            self.mn = ""
            return
        if vm_need is not None or lg_need is not None:
            self.kind = "wait"
            self.cost = 1
            self.rd = self.wr = self.cs = set()
            self.mn = "s_waitcnt"
            return
        t = text.split(";")[0].strip()
        mn = t.split()[0]
        self.mn = mn
        rest = t[len(mn):].strip()
        ops = [o.strip() for o in rest.split(",")] if rest else []
        ops = [o.split()[0] if o else o for o in ops]
        self.cs = set()
        rd, wr = set(), set()
        if mn.startswith("v_mfma"):
            self.kind = "mfma"
            wr = regs_of(ops[0])
            rd = regs_of(ops[1]) | regs_of(ops[2])
            self.cs = regs_of(ops[3])
        elif mn.startswith("v_permlane"):
            self.kind = "valu"
            wr = regs_of(ops[0]) | regs_of(ops[1])
            rd = set(wr)
        elif mn.startswith("v_"):
            self.kind = "trans" if mn.replace("_e32", "").replace("_e64", "") in TRANS else "valu"
            wr = regs_of(ops[0])
            for o in ops[1:]:
                rd |= regs_of(o)
            if mn.startswith("v_fmac") or mn.startswith("v_dot2c"):
                rd |= wr
            if mn.startswith("v_cndmask") and len(ops) == 3:
                rd |= {("vcc", 0)}
        elif mn.startswith("ds_read"):
            self.kind = "ds"
            wr = regs_of(ops[0])
            rd = regs_of(ops[1])
        elif mn.startswith("ds_write"):
            self.kind = "ds"
            for o in ops:
                rd |= regs_of(o)
        elif mn.startswith("buffer_load") or mn.startswith("buffer_atomic"):
            self.kind = "vmem"
            if t.rstrip().endswith("lds"):
                self.lds = True
                for o in ops:
                    rd |= regs_of(o)
                rd |= {("m0", 0)}
            else:
                if mn.startswith("buffer_load"):
                    wr = regs_of(ops[0])
                else:
                    rd |= regs_of(ops[0])
                    if " sc0" in t:
                        wr = regs_of(ops[0])
                for o in ops[1:]:
                    rd |= regs_of(o)
        elif mn.startswith("buffer_store"):
            self.kind = "vmem"
            self.store_data = regs_of(ops[0])
            for o in ops:
                rd |= regs_of(o)
        elif mn.startswith("buffer_") or mn.startswith("global_"):
            self.kind = "vmem"
            for o in ops:
                rd |= regs_of(o)
        elif mn in ("s_nop", "s_barrier", "s_waitcnt", "s_endpgm", "s_setprio", "s_sleep"):
            self.kind = "misc"
        elif mn.startswith("s_cbranch") or mn in ("s_branch", "s_setpc_b64", "s_call_b64"):
            self.kind = "br"
        elif mn.startswith("s_"):
            self.kind = "salu"
            if mn.startswith("s_cmp"):
                for o in ops:
                    rd |= regs_of(o)
            else:
                wr = regs_of(ops[0])
                for o in ops[1:]:
                    rd |= regs_of(o)
        else:
            raise ValueError("unknown instr " + text)
        self.rd, self.wr = rd, wr
        if cost is None:
            cost = 2 if self.kind == "trans" else 1
        self.cost = cost

    def states(self):
        if self.kind == "mark":
            return 0
        if self.mn == "s_nop":
            return int(self.text.split()[1]) + 1
        return 1

    def render(self):
        if self.kind == "wait":
            if self.vm_need is not None:
                return f"s_waitcnt vmcnt({self.n})"
            return f"s_waitcnt lgkmcnt({self.n})"
        return self.text


def label(name):
    return I(name + ":", mark="label")


def marker(*m):
    return I("", mark=m)


def isv(r):
    return r[0] in ("v", "a")


def need_states(p, c):
    need = 0
    pk, ck = p.kind, c.kind
    pvalu = pk in ("valu", "trans")
    cvalu = ck in ("valu", "trans")
    if pvalu:
        w = {r for r in p.wr if isv(r)}
        if ck == "mfma" and w & (c.rd | c.cs):
            need = max(need, 2)
        if c.mn.startswith("v_permlane") and w & c.rd:
            need = max(need, 2)
        if c.mn.startswith("v_readfirstlane") and w & c.rd:
            need = max(need, 1)
        if pk == "trans" and ck == "valu" and w & c.rd:
            need = max(need, 1)
        ws = {r for r in p.wr if not isv(r)}
        if ws:
            if cvalu and ws & c.rd:
                need = max(need, 2)
            if ck == "vmem" and ws & c.rd:
                need = max(need, 5)
            if ck == "salu" and ws & c.rd:
                need = max(need, 1)
    if pk == "mfma":
        if cvalu and p.wr & (c.rd | c.wr):
            need = max(need, 8)
        if ck in ("vmem", "ds") and p.wr & (c.rd | c.wr):
            need = max(need, 8)
        if ck == "mfma":
            if p.wr & c.rd:
                need = max(need, 8)
            if p.wr & c.cs and p.wr != c.cs:
                need = max(need, 6)
        if cvalu and p.cs & c.wr:
            need = max(need, 3)
    if pk == "salu" and ("m0", 0) in p.wr and getattr(c, "lds", False):
        need = max(need, 1)
    if pk == "vmem" and getattr(p, "store_data", None) and (cvalu or ck == "mfma") and p.store_data & c.wr:
        need = max(need, 2)
    return need


def fix_hazards(stream, verbose=None):
    out = []
    nfix = 0
    for c in stream:
        if c.kind != "mark":
            dist = 0
            short = 0
            for p in reversed(out):
                if p.kind == "mark":
                    continue
                n = need_states(p, c)
                if n > dist:
                    short = max(short, n - dist)
                dist += p.states()
                if dist >= 10:
                    break
            if short:
                out.append(I(f"s_nop {short - 1}"))
                nfix += 1
                if verbose is not None:
                    verbose.append((short, c.render() if c.kind != "wait" else "wait"))
        out.append(c)
    return out, nfix


def resolve_counts(stream):
    vm, lg = [], []
    for c in stream:
        if c.kind == "vmem":
            vm.append(c.vm_tag)
        elif c.kind == "ds":
            lg.append(c.lg_tag)
        elif c.kind == "wait":
            lst, need, cap = (vm, c.vm_need, 63) if c.vm_need is not None else (lg, c.lg_need, 15)
            idx = -1
            found = set()
            for k in range(len(lst) - 1, -1, -1):
                if lst[k] in need:
                    found.add(lst[k])
                    if idx < 0:
                        idx = k
                    if len(found) == len(set(need)):
                        break
            assert len(found) == len(set(need)), ("never issued", need, found)
            c.n = min(len(lst) - 1 - idx, cap)


class Item:
    def __init__(self, ins, lo=0, hi=10 ** 9, deps=(), name=None):
        self.ins = ins if isinstance(ins, list) else [ins]
        self.ins = [x if isinstance(x, I) else I(x) for x in self.ins]
        self.lo, self.hi = lo, hi
        self.deps = list(deps)
        self.cost = sum(x.cost for x in self.ins)
        self.gap = None
        self.name = name


def pack_step(mfmas, fixed, items, cap=2, stats=None):
    n = len(mfmas)
    for it in items:
        it.hi = min(it.hi, n - 1)
    changed = True
    while changed:
        changed = False
        for it in items:
            for d in it.deps:
                if d.gap is None and d.hi > it.hi - 1:
                    d.hi = it.hi - 1
                    changed = True
    left = list(items)
    out = []
    over = 0
    for g in range(n):
        out.append(mfmas[g])
        used = 0
        for x in fixed.get(g, []):
            out.append(x)
            used += x.cost
        while True:
            ready = [it for it in left if it.lo <= g and all(d.gap is not None and d.gap < g for d in it.deps)]
            if not ready:
                break
            forced = [it for it in ready if it.hi <= g]
            pick = None
            if forced:
                pick = forced[0]
            else:
                room = cap - used
                fit = [it for it in ready if it.cost <= room]
                if fit:
                    best = max(x.cost for x in fit)
                    fit.sort(key=lambda it: (it.hi, -it.cost))
                    urgent = fit[0]
                    big = [x for x in fit if x.cost == best]
                    pick = urgent if urgent.hi - g <= 3 else big[0]
            if pick is None:
                break
            pick.gap = g
            left.remove(pick)
            out.extend(pick.ins)
            used += pick.cost
        if used > cap:
            over += used - cap
    assert not left, [x.ins[0].text for x in left]
    if stats is not None:
        stats.append(over)
    return out


def compress_loops(stream):
    its = {}
    order = []
    cur = None
    out = []
    for c in stream:
        if c.kind == "mark" and isinstance(c.mark, tuple) and c.mark[0] == "loop_begin":
            cur = (c.mark[1], c.mark[2])
            its.setdefault(c.mark[1], []).append([])
            if c.mark[2] == 0:
                out.append(("LOOP", c.mark[1]))
            continue
        if c.kind == "mark" and isinstance(c.mark, tuple) and c.mark[0] == "loop_end":
            cur = None
            continue
        if cur is not None:
            its[cur[0]][-1].append(c)
        else:
            out.append(c)
    res = []
    for c in out:
        if isinstance(c, tuple):
            bodies = its[c[1]]
            b0 = bodies[0]
            for b in bodies[1:]:
                assert len(b) == len(b0), ("loop length differs", c[1], len(b), len(b0))
                for x, y in zip(b0, b):
                    if x.kind == "wait":
                        assert y.kind == "wait" and (x.vm_need is None) == (y.vm_need is None)
                        x.n = min(x.n, y.n)
                    else:
                        assert x.text == y.text, ("loop text differs", x.text, y.text)
            res.extend(b0)
        else:
            res.append(c)
    return res
```

```python
import sys
from fw import *

KN = "standalone__mha_block_cached__near_ridge_kernel"
RN = "mha_reduce_kernel"

TILE = 16896
PIECE = 1056
BIAS = 2048
D = 5
NB = 8
LOG2E_16 = 0x3DB8AA3B
THRESH = 0x41800000

vKV = [0, 1, 2, 3]
vW = [4, 5, 6, 7]
vK, vV = 8, 9
vL = [10, 11, 12]
vMX = 13
vX = 14
vW9 = 15
vNEG = 16
vP = 28
HX, HY, HZ = 40, 52, 64
vACC = 76
aACC = 0
aFB = 12
aQ = 44
aO1 = 140
aSAVE = 236

sWV = 16
sLDSW = 17
sKOFF, sVOFF, sWOFF = 18, 19, 44
sK, sV, sWQ, sWO, sX, sP = 20, 24, 28, 32, 36, 40
sQT1, sQT2 = 45, 46
sT = 47
sC = 48
sCNT = 49
sTMP = 50
sRET = 60
sST = 64


def vr(b, n=4):
    return f"v[{b}:{b + n - 1}]"


def ar(b, n=4):
    return f"a[{b}:{b + n - 1}]"


def sr(b, n=4):
    return f"s[{b}:{b + n - 1}]"


def acc(dt, qt):
    i = dt * 3 + qt
    return ("v", vACC + 4 * i) if i < 45 else ("a", aACC + 4 * (i - 45))


def accr(dt, qt):
    k, b = acc(dt, qt)
    return f"{k}[{b}:{b + 3}]"


def mfma(d, a, b, c):
    return I(f"v_mfma_f32_16x16x32_bf16 {d}, {a}, {b}, {c}")


class Gen:
    def __init__(self, opt):
        self.opt = opt
        self.steps = []
        self.slot = {}
        self.issue = {}
        self.nstamp = 0
        self.rare_sites = {}

    def plan(self):
        slot, issue = self.slot, self.issue

        def add(step, tile):
            issue.setdefault(step, []).append(tile)

        wseq = {0: [8, 4, 5, 6, 7], 1: [8, 7, 4, 5, 6]}
        vseq = {0: [7, 4, 5, 6], 1: [6, 7, 4, 5]}
        for h in range(2):
            for i in range(14):
                slot[("wq", h, i)] = wseq[h][i % 5]
            for j in range(16):
                slot[("V", h, j)] = vseq[h][j % 4]
            for s in range(1, 10):
                add(("Q", h, s), ("wq", h, s + 4))
            add(("Q", h, 10), ("V", h, 0))
            add(("Q", h, 12), ("V", h, 1))
            add(("Q", h, 13), ("V", h, 2))
            add(("K0", h), ("V", h, 3))
            add(("A", h, 0), ("K", h * 16 + 4))
            for j in range(1, 13):
                add(("A", h, j), ("V", h, j + 3))
            for j in range(0, 15):
                if h * 16 + j + 5 <= 33:
                    add(("B", h, j), ("K", h * 16 + j + 5))
        for i in range(34):
            slot[("K", i)] = i % 4
        for s in range(4):
            add(("Q", 0, s), ("K", s))
        add(("A", 0, 13), ("wq", 1, 1))
        add(("B", 0, 13), ("wq", 1, 0))
        add(("A", 0, 14), ("wq", 1, 2))
        add(("B", 0, 15), ("wq", 1, 3))
        add(("Q", 1, 0), ("wq", 1, 4))
        wos = [8, 6, 2, 7, 3, 0, 4, 1, 5]
        for i in range(32):
            slot[("wo", i)] = wos[i % 9]
        for st, t in [(("A", 1, 13), 0), (("A", 1, 13), 1), (("B", 1, 13), 2), (("A", 1, 14), 3), (("B", 1, 14), 4),
                      (("B", 1, 14), 5), (("B", 1, 15), 6), (("B", 1, 15), 7), (("O", 0), 8)]:
            add(st, ("wo", t))
        for s in range(1, 24):
            add(("O", s), ("wo", s + 8))

    def dma(self, tile):
        kind = tile[0]
        sl = self.slot[tile]
        ins = [I(f"s_add_u32 m0, s{sLDSW}, {sl * TILE}")]
        pre = []
        if kind == "K":
            srd, vo, so, adv = sK, vKV, sKOFF, 16384
        elif kind == "V":
            srd, vo, so, adv = sV, vKV, sVOFF, 16384
        elif kind == "wq":
            srd, vo, so, adv = sWQ, vW, sTMP, None
            pre = [I(f"s_add_u32 s{sTMP}, s{sWOFF}, {tile[1] * 512 + tile[2] * 262144}")]
        else:
            srd, vo, so, adv = sWO, vW, sTMP, None
            i = tile[1]
            pre = [I(f"s_add_u32 s{sTMP}, s{sWOFF}, {(i % 16) * 28672 + (i // 16) * 448}")]
        mod = ""
        if kind in ("K", "V") and self.opt.get("nt", 1):
            mod = " nt"
        if kind in ("wq", "wo") and self.opt.get("ntw"):
            mod = " nt"
        loads = [I(f"buffer_load_dwordx4 v{vo[ii]}, {sr(srd)}, s{so} offen offset:{ii * PIECE}{mod} lds", vm_tag=tile)
                 for ii in range(4)]
        post = [I(f"s_add_u32 s{so}, s{so}, {adv}")] if adv else []
        return pre + ins, loads, post

    def mod(self, k):
        return {0: "", 1: " nt", 2: " sc1", 3: " sc0 sc1", 4: " sc1 nt"}[self.opt.get(k, 0)]

    def xloads(self, h, c):
        b = aQ + (c % 8) * 12
        so = ["0", f"s{sQT1}", f"s{sQT2}"]
        return [I(f"buffer_load_dwordx4 {ar(b + 4 * qt)}, v{vX}, {sr(sX)}, {so[qt]} offen offset:{c * 64}{self.mod('ntx')}",
                  vm_tag=("x", h, c)) for qt in range(3)]

    def vaddr(self, sl):
        if sl == 8:
            return vW9, 0
        if sl >= 4:
            return vV, (sl - 4) * TILE
        return vK, sl * TILE

    def tr_frag(self, sl, col):
        va, off = self.vaddr(sl)
        return [(f"ds_read_b64_tr_b16 a[{{0}}:{{1}}], v{va} offset:{off + col * 32}", 0),
                (f"ds_read_b64_tr_b16 a[{{0}}:{{1}}], v{va} offset:{off + col * 32 + 512}", 2)]

    def step_q(self, h, c):
        tile = ("wq", h, c)
        fr = []
        for dt in range(16):
            ms = []
            for qt in range(3):
                b = aQ + (c % 8) * 12 + 4 * qt
                ms.append((accr(dt, qt), ar(b), "0" if c == 0 else accr(dt, qt)))
            fr.append(dict(reads=self.tr_frag(self.slot[tile], dt), ms=ms))
        items = []
        if 1 <= c <= 6:
            prev = None
            for x in self.xloads(h, c + 7):
                it = Item(x, lo=12, deps=[prev] if prev else [])
                items.append(it)
                prev = it
        return dict(name=("Q", h, c), tile=tile, frags=fr, items=items)

    @staticmethod
    def halves(jj):
        return (HX, HY) if jj % 2 == 0 else (HZ, HX)

    def step_qk(self, h, jj, name, items):
        tile = ("K", h * 16 + jj)
        sl = self.slot[tile]
        hv = self.halves(jj)
        order = [1, 0] if jj % 2 == 0 else [0, 1]
        fr = []
        for f in range(16):
            t = order[f // 8]
            c = f % 8
            ms = []
            for qt in range(3):
                d = vr(hv[t] + 4 * qt)
                cc = d if c else ("0" if jj == 0 else vr(vNEG + 4 * qt))
                ms.append((d, ar(aQ + c * 12 + 4 * qt), cc))
            fr.append(dict(reads=[(f"ds_read_b128 a[{{0}}:{{3}}], v{vK} offset:{sl * TILE + t * 512 + c * 64}", 0)], ms=ms))
        return dict(name=name, tile=tile, frags=fr, items=items)

    def soft_first(self, lo=0, after=None):
        items = []
        for i in range(12):
            e = Item(f"v_exp_f32 v{HX + i}, v{HX + i}", lo=lo, deps=[after] if after else [])
            a = Item(f"v_add_f32 v{vL[i // 4]}, v{vL[i // 4]}, v{HX + i}", lo=lo, deps=[e])
            items += [e, a]
        return items

    def soft_second(self, j):
        t0, t1 = self.halves(j)
        xoff = 0 if t0 == HX else 2
        other = t1 if t0 == HX else t0
        ooff = 2 - xoff
        items = []
        for qt in range(3):
            for k in range(2):
                s = HX + 4 * qt + 2 * k
                items.append(Item(f"v_cvt_pk_bf16_f32 v{vP + 4 * qt + xoff + k}, v{s}, v{s + 1}", hi=22))
        for qt in range(3):
            for k in range(2):
                s = other + 4 * qt + 2 * k
                e0 = Item(f"v_exp_f32 v{s}, v{s}", hi=44)
                e1 = Item(f"v_exp_f32 v{s + 1}, v{s + 1}", hi=44)
                a0 = Item(f"v_add_f32 v{vL[qt]}, v{vL[qt]}, v{s}", deps=[e0], hi=47)
                a1 = Item(f"v_add_f32 v{vL[qt]}, v{vL[qt]}, v{s + 1}", deps=[e1], hi=47)
                cv = Item(f"v_cvt_pk_bf16_f32 v{vP + 4 * qt + ooff + k}, v{s}, v{s + 1}", deps=[e0, e1], hi=45)
                items += [e0, e1, a0, a1, cv]
        return items

    def max_first(self, jj, lo):
        t0, t1 = self.halves(jj)
        hb = t1 if t0 == HX else t0
        txt = [f"v_max3_f32 v{vMX}, v{hb}, v{hb + 1}, v{hb + 2}"]
        for k in range(4):
            txt.append(f"v_max3_f32 v{vMX}, v{vMX}, v{hb + 3 + 2 * k}, v{hb + 4 + 2 * k}")
        txt.append(f"v_max_f32 v{vMX}, v{vMX}, v{hb + 11}")
        items, prev = [], None
        for t in txt:
            it = Item(t, lo=lo, deps=[prev] if prev else [])
            items.append(it)
            prev = it
        return items

    def step_a(self, h, j):
        items = self.soft_second(j) + self.max_first(j + 1, 27)
        return self.step_qk(h, j + 1, ("A", h, j), items)

    def step_b(self, h, j, site):
        tile = ("V", h, j)
        fr = []
        for dt in range(16):
            ms = [(accr(dt, qt), vr(vP + 4 * qt), "0" if j == 0 else accr(dt, qt)) for qt in range(3)]
            fr.append(dict(reads=self.tr_frag(self.slot[tile], dt), ms=ms))
        items = []
        if j < 15:
            prev = None
            for k in range(6):
                it = Item(f"v_max3_f32 v{vMX}, v{vMX}, v{HX + 2 * k}, v{HX + 2 * k + 1}", lo=3, hi=12,
                          deps=[prev] if prev else [])
                items.append(it)
                prev = it
            self.rare_sites[site] = (j + 1) % 2
            chk = Item([I(f"v_cmp_lt_f32 vcc, s{sT}, v{vMX}"), I(f"s_cbranch_vccnz RARE_{site}"), label(f"RET_{site}")],
                       deps=[prev], hi=13)
            items.append(chk)
            items += self.soft_first(after=chk)
        else:
            prev = None
            for qt in range(3):
                l, t = vL[qt], HX + qt
                seq = [f"v_mov_b32 v{t}, v{l}", f"v_permlane32_swap_b32 v{l}, v{t}", f"v_add_f32 v{l}, v{l}, v{t}",
                       f"v_mov_b32 v{t}, v{l}", f"v_permlane16_swap_b32 v{l}, v{t}", f"v_add_f32 v{l}, v{l}, v{t}",
                       f"v_rcp_f32 v{l}, v{l}"]
                prev = None
                pp = None
                for s in seq:
                    it = Item(s, deps=[prev] if prev else [])
                    if s.startswith("v_permlane"):
                        mid = Item("s_nop 0", deps=[prev])
                        items.append(mid)
                        it.deps = [mid]
                    items.append(it)
                    prev = it
        if h == 0 and j in (14, 15):
            prev = None
            for c in range(4):
                for x in self.xloads(1, (j - 14) * 4 + c):
                    it = Item(x, lo=8, deps=[prev] if prev else [])
                    items.append(it)
                    prev = it
        return dict(name=("B", h, j), tile=tile, frags=fr, items=items)

    def step_o(self, s):
        tile = ("wo", s)
        i = s % 16
        hh, c = i // 8, i % 8
        base = (aO1 if hh == 0 else aQ) + c * 12
        fr = []
        for nt in range(14):
            ms = [(accr(nt, qt), ar(base + 4 * qt), "0" if i == 0 else accr(nt, qt)) for qt in range(3)]
            fr.append(dict(reads=self.tr_frag(self.slot[tile], nt), ms=ms))
        return dict(name=("O", s), tile=tile, frags=fr, items=[])

    def acc_src(self, dt, qt, tmp, out):
        k, b = acc(dt, qt)
        if k == "v":
            return b
        for r in range(4):
            out.append(I(f"v_accvgpr_read_b32 v{tmp + r}, a{b + r}"))
        return tmp

    def blob_qconv(self, h):
        out = []
        T = HX
        n = 0
        for c in range(8):
            for qt in range(3):
                t = T + (n % 3) * 12
                n += 1
                f = t + 8
                for half in range(2):
                    src = self.acc_src(2 * c + half, qt, t + 4 * half, out)
                    for r in range(4):
                        out.append(I(f"v_mul_f32 v{t + 4 * half + r}, s{sC}, v{src + r}"))
                for half in range(2):
                    for k in range(2):
                        s = t + 4 * half + 2 * k
                        out.append(I(f"v_cvt_pk_bf16_f32 v{f + 2 * half + k}, v{s}, v{s + 1}"))
                for k in range(2):
                    out.append(I(f"v_permlane32_swap_b32 v{f + k}, v{f + 2 + k}"))
                for k in range(2):
                    out.append(I(f"v_permlane16_swap_b32 v{f + k}, v{f + 2 + k}"))
                for r in range(4):
                    out.append(I(f"v_accvgpr_write_b32 a{aQ + c * 12 + 4 * qt + r}, v{f + r}"))
        if h == 1:
            out += self.wo_voff()
        return out

    def wo_voff(self):
        out = []
        t = HX
        out.append(I(f"v_mbcnt_lo_u32_b32 v{t}, -1, 0"))
        out.append(I(f"v_mbcnt_hi_u32_b32 v{t}, -1, v{t}"))
        out.append(I(f"v_lshrrev_b32 v{t + 1}, 5, v{t}"))
        out.append(I(f"v_and_b32 v{t}, 31, v{t}"))
        out.append(I(f"v_mul_u32_u24 v{t + 1}, {16 * 896}, v{t + 1}"))
        out.append(I(f"v_lshl_add_u32 v{t}, v{t}, 4, v{t + 1}"))
        out.append(I(f"s_mul_i32 s{sTMP + 1}, s{sWV}, {4 * 896}"))
        out.append(I(f"s_add_u32 s{sTMP + 1}, s{sTMP + 1}, {BIAS}"))
        out.append(I(f"v_add_u32 v{vW[0]}, s{sTMP + 1}, v{t}"))
        for ii in range(1, 4):
            out.append(I(f"v_subrev_u32 v{vW[ii]}, {160 * ii}, v{vW[0]}"))
        out.append(I(f"s_mov_b32 s{sWOFF}, s{sTMP + 2}"))
        return out

    def blob_maxinit(self):
        out = []
        t0, t1 = self.halves(0)
        T = vP
        for qt in range(3):
            a, b = t0 + 4 * qt, t1 + 4 * qt
            m, m2 = T + 2 * qt, T + 2 * qt + 1
            out.append(I(f"v_max3_f32 v{m}, v{a}, v{a + 1}, v{a + 2}"))
            out.append(I(f"v_max3_f32 v{m2}, v{a + 3}, v{b}, v{b + 1}"))
            out.append(I(f"v_max3_f32 v{m}, v{m}, v{b + 2}, v{b + 3}"))
            out.append(I(f"v_max_f32 v{m}, v{m}, v{m2}"))
        for sw in ("32", "16"):
            for qt in range(3):
                out.append(I(f"v_mov_b32 v{T + 2 * qt + 1}, v{T + 2 * qt}"))
            for qt in range(3):
                out.append(I(f"v_permlane{sw}_swap_b32 v{T + 2 * qt}, v{T + 2 * qt + 1}"))
            for qt in range(3):
                out.append(I(f"v_max_f32 v{T + 2 * qt}, v{T + 2 * qt}, v{T + 2 * qt + 1}"))
        for qt in range(3):
            out.append(I(f"v_ceil_f32 v{T + 2 * qt}, v{T + 2 * qt}"))
        for qt in range(3):
            for r in range(4):
                out.append(I(f"v_sub_f32 v{vNEG + 4 * qt + r}, 0, v{T + 2 * qt}"))
            out.append(I(f"v_mov_b32 v{vL[qt]}, 0"))
        for qt in range(3):
            for hb in (t0, t1):
                for r in range(4):
                    out.append(I(f"v_sub_f32 v{hb + 4 * qt + r}, v{hb + 4 * qt + r}, v{T + 2 * qt}"))
        for i in range(12):
            out.append(I(f"v_exp_f32 v{HX + i}, v{HX + i}"))
        for i in range(12):
            out.append(I(f"v_add_f32 v{vL[i // 4]}, v{vL[i // 4]}, v{HX + i}"))
        return out

    def blob_a15(self):
        its = self.soft_second(15)
        cv = [x for x in its if x.ins[0].mn.startswith("v_cvt") and not x.deps]
        ex = [x for x in its if x.ins[0].mn.startswith("v_exp")]
        rest = [x for x in its if x not in cv and x not in ex]
        return [y for x in (ex + cv + rest) for y in x.ins]

    def blob_oconv(self, h):
        out = []
        dst = aO1 if h == 0 else aQ
        n = 0
        for c in range(8):
            for qt in range(3):
                t = HX + (n % 3) * 12
                n += 1
                f = t + 8
                for half in range(2):
                    src = self.acc_src(2 * c + half, qt, t + 4 * half, out)
                    for r in range(4):
                        out.append(I(f"v_mul_f32 v{t + 4 * half + r}, v{vL[qt]}, v{src + r}"))
                for half in range(2):
                    for k in range(2):
                        s = t + 4 * half + 2 * k
                        out.append(I(f"v_cvt_pk_bf16_f32 v{f + 2 * half + k}, v{s}, v{s + 1}"))
                for r in range(4):
                    out.append(I(f"v_accvgpr_write_b32 a{dst + c * 12 + 4 * qt + r}, v{f + r}"))
        if h == 1:
            out.append(I(f"v_subrev_u32 v{vK}, {4 * TILE}, v{vV}"))
            out.append(I(f"v_mbcnt_lo_u32_b32 v{vX}, -1, 0"))
            out.append(I(f"v_mbcnt_hi_u32_b32 v{vX}, -1, v{vX}"))
            out.append(I(f"v_lshlrev_b32 v{vX}, 4, v{vX}"))
        return out

    def blob_store(self, p):
        out = []
        n = 0
        for k in range(7):
            for qt in range(3):
                f = vNEG + (n % 15) * 4
                u = (p * 7 + k) * 3 + qt
                for half in range(2):
                    kk, b = acc(2 * k + half, qt)
                    assert kk == "v"
                    for q in range(2):
                        out.append(I(f"v_cvt_pk_bf16_f32 v{f + 2 * half + q}, v{b + 2 * q}, v{b + 2 * q + 1}"))
                if n % 4 == 0 or True:
                    if (u % 4 == 0) or n == 0:
                        out.append(I(f"s_mov_b32 s{sTMP + 1}, {(u // 4) * 4096}"))
                out.append(I(f"buffer_store_dwordx4 {vr(f)}, v{vX}, {sr(sP)}, s{sTMP + 1} offen offset:{(u % 4) * 1024}{self.mod('nts')}",
                             vm_tag=("st", u)))
                n += 1
        return out

    def stamp(self):
        if not self.opt.get("stamps"):
            return []
        k = self.nstamp
        self.nstamp += 1
        return [I(f"s_memtime s[{sST + 2 * k}:{sST + 2 * k + 1}]")]

    def rare(self, par):
        t0, t1 = self.halves(par)
        out = [label(f"RAREP_{par}"), I("s_nop 15")]
        for r in range(8):
            out.append(I(f"v_accvgpr_write_b32 a{aSAVE + r}, v{r}"))
        for qt in range(3):
            a, b = t0 + 4 * qt, t1 + 4 * qt
            out.append(I(f"v_max3_f32 v0, v{a}, v{a + 1}, v{a + 2}"))
            out.append(I(f"v_max3_f32 v0, v0, v{a + 3}, v{b}"))
            out.append(I(f"v_max3_f32 v0, v0, v{b + 1}, v{b + 2}"))
            out.append(I(f"v_max_f32 v0, v0, v{b + 3}"))
            for sw in ("32", "16"):
                out.append(I("v_mov_b32 v1, v0"))
                out.append(I(f"v_permlane{sw}_swap_b32 v0, v1"))
                out.append(I("v_max_f32 v0, v0, v1"))
            out.append(I("v_ceil_f32 v0, v0"))
            out.append(I("v_max_f32 v0, 0, v0"))
            for r in range(4):
                out.append(I(f"v_sub_f32 v{a + r}, v{a + r}, v0"))
                out.append(I(f"v_sub_f32 v{b + r}, v{b + r}, v0"))
                out.append(I(f"v_sub_f32 v{vNEG + 4 * qt + r}, v{vNEG + 4 * qt + r}, v0"))
            out.append(I("v_min_f32 v0, 0x43800000, v0"))
            out.append(I("v_cvt_i32_f32 v2, v0"))
            out.append(I("v_sub_u32 v2, 0, v2"))
            out.append(I(f"v_ldexp_f32 v{vL[qt]}, v{vL[qt]}, v2"))
            for r in range(4):
                p = vP + 4 * qt + r
                out.append(I(f"v_lshlrev_b32 v3, 16, v{p}"))
                out.append(I(f"v_and_b32 v4, 0xffff0000, v{p}"))
                out.append(I("v_ldexp_f32 v3, v3, v2"))
                out.append(I("v_ldexp_f32 v4, v4, v2"))
                out.append(I(f"v_cvt_pk_bf16_f32 v{p}, v3, v4"))
            for dt in range(16):
                k, bb = acc(dt, qt)
                for r in range(4):
                    if k == "v":
                        out.append(I(f"v_ldexp_f32 v{bb + r}, v{bb + r}, v2"))
                    else:
                        out.append(I(f"v_accvgpr_read_b32 v3, a{bb + r}"))
                        out.append(I("v_ldexp_f32 v3, v3, v2"))
                        out.append(I(f"v_accvgpr_write_b32 a{bb + r}, v3"))
        for r in range(8):
            out.append(I(f"v_accvgpr_read_b32 v{r}, a{aSAVE + r}"))
        out.append(I("s_nop 1"))
        out.append(I(f"s_setpc_b64 s[{sRET}:{sRET + 1}]"))
        return out

    def prologue(self):
        o = []
        A = lambda t: o.append(I(t))
        A("s_cmp_ge_u32 s2, 256")
        A("s_cbranch_scc1 L_done")
        A("s_load_dwordx4 s[4:7], s[0:1], 0")
        A("s_load_dwordx4 s[8:11], s[0:1], 16")
        A("s_load_dwordx2 s[12:13], s[0:1], 32")
        A("s_load_dwordx2 s[14:15], s[0:1], 56")
        o += self.stamp()
        A("v_lshrrev_b32 v20, 6, v0")
        A("v_and_b32 v21, 63, v0")
        A(f"v_readfirstlane_b32 s{sWV}, v20")
        mp = self.opt.get("map", 0)
        if mp == 0:
            A("s_and_b32 s52, s2, 7")
            A("s_lshr_b32 s53, s2, 3")
        elif mp == 1:
            A("s_lshr_b32 s52, s2, 3")
            A("s_and_b32 s52, s52, 7")
            A("s_and_b32 s53, s2, 7")
            A("s_lshl_b32 s53, s53, 2")
            A("s_lshr_b32 s54, s2, 6")
            A("s_add_u32 s53, s53, s54")
        elif mp == 2:
            A("s_and_b32 s52, s2, 1")
            A("s_lshl_b32 s52, s52, 2")
            A("s_lshr_b32 s54, s2, 3")
            A("s_and_b32 s54, s54, 3")
            A("s_add_u32 s52, s52, s54")
            A("s_lshr_b32 s53, s2, 1")
            A("s_and_b32 s53, s53, 3")
            A("s_lshl_b32 s53, s53, 3")
            A("s_lshr_b32 s54, s2, 5")
            A("s_add_u32 s53, s53, s54")
        A("s_lshl_b32 s54, s53, 3")
        A("s_add_u32 s54, s54, s52")
        A("v_lshrrev_b32 v22, 5, v21")
        A("v_and_b32 v23, 31, v21")
        A("v_lshlrev_b32 v23, 4, v23")
        A(f"s_lshl_b32 s55, s{sWV}, 11")
        A(f"s_add_u32 s55, s55, {BIAS}")
        A("v_lshl_add_u32 v24, v22, 13, v23")
        A(f"v_add_u32 v{vKV[0]}, s55, v24")
        for ii in range(1, 4):
            A(f"v_subrev_u32 v{vKV[ii]}, {544 * ii}, v{vKV[0]}")
        A(f"s_lshl_b32 s55, s{sWV}, 16")
        A("v_lshl_add_u32 v24, v22, 15, v23")
        A(f"v_add_u32 v{vW[0]}, s55, v24")
        for ii in range(1, 4):
            A(f"v_add_u32 v{vW[ii]}, {(8192 - PIECE) * ii}, v{vW[0]}")
        A("v_and_b32 v24, 15, v21")
        A("v_lshrrev_b32 v25, 4, v21")
        A(f"v_mul_u32_u24 v26, {PIECE}, v24")
        A(f"v_lshl_add_u32 v{vK}, v25, 4, v26")
        A(f"s_mul_i32 s55, s{sWV}, {48 * 896}")
        A("v_mul_u32_u24 v26, 896, v24")
        A("v_lshl_add_u32 v26, v25, 4, v26")
        A(f"v_add_u32 v{vX}, s55, v26")
        A("v_lshrrev_b32 v24, 2, v21")
        A("v_and_b32 v25, 3, v21")
        A(f"v_mul_u32_u24 v24, {PIECE}, v24")
        A("v_lshl_add_u32 v24, v25, 3, v24")
        A(f"v_add_u32 v{vV}, {4 * TILE}, v24")
        A(f"v_add_u32 v{vW9}, {8 * TILE}, v24")
        A(f"s_mul_i32 s{sLDSW}, s{sWV}, {4 * PIECE}")
        A(f"s_mov_b32 s{sKOFF}, 0")
        A(f"s_mov_b32 s{sVOFF}, 0")
        A(f"s_lshl_b32 s{sWOFF}, s52, 10")
        A(f"s_mul_i32 s{sTMP + 2}, s52, {512 * 896}")
        A(f"s_mov_b32 s{sQT1}, {16 * 896}")
        A(f"s_mov_b32 s{sQT2}, {32 * 896}")
        A(f"s_mov_b32 s{sT}, {THRESH:#x}")
        A(f"s_mov_b32 s{sC}, {LOG2E_16:#x}")
        A("s_waitcnt lgkmcnt(0)")
        A("s_mul_i32 s55, s53, 172032")
        A(f"s_add_u32 s{sX}, s4, s55")
        A(f"s_addc_u32 s{sX + 1}, s5, 0")
        A(f"s_mov_b32 s{sX + 2}, 172032")
        A(f"s_mov_b32 s{sX + 3}, 0x20000")
        A(f"s_mov_b32 s{sWQ}, s10")
        A(f"s_mov_b32 s{sWQ + 1}, s11")
        A(f"s_mov_b32 s{sWQ + 2}, 3670016")
        A(f"s_mov_b32 s{sWQ + 3}, 0x20000")
        first = []
        for c in range(4):
            first += self.xloads(0, c)
            pre, loads, post = self.dma(("wq", 0, c))
            first += pre + loads + post
        pre, loads, post = self.dma(("wq", 0, 4))
        first += pre + loads + post
        for c in range(4, 8):
            first += self.xloads(0, c)
        o += first
        A("s_lshl_b32 s55, s54, 19")
        for (srd, p) in ((sK, 6), (sV, 8)):
            A(f"s_add_u32 s{srd}, s{p}, s55")
            A(f"s_addc_u32 s{srd + 1}, s{p + 1}, 0")
            A(f"s_sub_u32 s{srd}, s{srd}, {BIAS}")
            A(f"s_subb_u32 s{srd + 1}, s{srd + 1}, 0")
            A(f"s_mov_b32 s{srd + 2}, {524288 + BIAS}")
            A(f"s_mov_b32 s{srd + 3}, 0x20000")
        A(f"s_sub_u32 s{sWO}, s12, {BIAS}")
        A(f"s_subb_u32 s{sWO + 1}, s13, 0")
        A(f"s_mov_b32 s{sWO + 2}, {3670016 + BIAS}")
        A(f"s_mov_b32 s{sWO + 3}, 0x20000")
        A("s_mul_i32 s55, s54, 172032")
        A(f"s_mul_i32 s56, s{sWV}, 43008")
        A("s_add_u32 s55, s55, s56")
        A(f"s_add_u32 s{sP}, s14, s55")
        A(f"s_addc_u32 s{sP + 1}, s15, 0")
        A(f"s_mov_b32 s{sP + 2}, 43008")
        A(f"s_mov_b32 s{sP + 3}, 0x20000")
        o.append(I(None, vm_need=[("wq", 0, 0), ("x", 0, 0)]))
        A("s_barrier")
        return o

    def build(self):
        self.plan()
        pro = self.prologue()
        seq = []
        for h in range(2):
            seq.append(("blob", self.stamp()))
            for c in range(14):
                seq.append(("step", self.step_q(h, c)))
            seq.append(("blob", self.stamp() + self.blob_qconv(h) + self.stamp()))
            seq.append(("step", self.step_qk(h, 0, ("K0", h), [])))
            seq.append(("blob", self.blob_maxinit()))
            seq.append(("step", self.step_a(h, 0)))
            seq.append(("step", self.step_b(h, 0, f"h{h}p")))
            seq.append(("blob", [I(f"s_mov_b32 s{sCNT}, 2")]))
            for it in range(3):
                seq.append(("mark", marker("loop_begin", f"att{h}", it)))
                seq.append(("blob", [label(f"L_att{h}")]))
                for u in range(4):
                    j = 1 + it * 4 + u
                    seq.append(("step", self.step_a(h, j)))
                    seq.append(("step", self.step_b(h, j, f"h{h}l{u}")))
                seq.append(("blob", [I(f"s_sub_u32 s{sCNT}, s{sCNT}, 1"), I(f"s_cbranch_scc0 L_att{h}")]))
                seq.append(("mark", marker("loop_end", f"att{h}", it)))
            for j in (13, 14):
                seq.append(("step", self.step_a(h, j)))
                seq.append(("step", self.step_b(h, j, f"h{h}t{j}")))
            seq.append(("blob", self.blob_a15()))
            seq.append(("step", self.step_b(h, 15, None)))
            seq.append(("blob", self.stamp() + self.blob_oconv(h)))
        seq.append(("blob", self.stamp()))
        for s in range(32):
            seq.append(("step", self.step_o(s)))
            if s % 16 == 15:
                seq.append(("blob", self.stamp() + self.blob_store(s // 16)))
        steps = [e[1] for e in seq if e[0] == "step"]
        allfr = []
        for si, st in enumerate(steps):
            st["f0"] = len(allfr)
            st["next"] = steps[si + 1] if si + 1 < len(steps) else None
            for fr in st["frags"]:
                fr["id"] = len(allfr)
                fr["step"] = st
                allfr.append(fr)

        def reads_of(fid):
            fr = allfr[fid]
            b = aFB + 4 * (fid % NB)
            return [I(t.format(b + o, b + o + 1, b + o + 2, b + o + 3), lg_tag=fid) for (t, o) in fr["reads"]]

        stream = pro
        for f in range(D):
            stream += reads_of(f)
        stream.append(I(None, lg_need=[0, 1]))
        stats = []
        for kind, e in seq:
            if kind == "mark":
                stream.append(e)
                continue
            if kind == "blob":
                stream += e
                continue
            st = e
            nf = len(st["frags"])
            mf, fixed = [], {}
            for k, fr in enumerate(st["frags"]):
                fid = fr["id"]
                fb = ar(aFB + 4 * (fid % NB))
                g0 = len(mf)
                for (d, b, c) in fr["ms"]:
                    mf.append(mfma(d, fb, b, c))
                if fid + D < len(allfr):
                    for q, r in enumerate(reads_of(fid + D)):
                        fixed.setdefault(g0 + q, []).append(r)
                if (fid + 1) % 2 == 0 and fid + 1 < len(allfr):
                    need = [x for x in (fid + 1, fid + 2) if x < len(allfr)]
                    fixed.setdefault(g0 + 2, []).append(I(None, lg_need=need))
            items = list(st["items"])
            nxt = st["next"]
            if nxt is not None:
                need = [nxt["tile"]]
                if nxt["name"][0] == "Q":
                    need.append(("x", nxt["name"][1], nxt["name"][2]))
                splo = self.opt.get("splo", 2)
                sp = Item([I(None, vm_need=need), I("s_barrier")], lo=splo, hi=min(splo + 3, 3 * (nf - D) - 1))
                sp.ins[1].sp = st["name"]
                items.insert(0, sp)
                prev = sp
                for tile in self.issue.get(st["name"], []):
                    pre, loads, post = self.dma(tile)
                    for x in pre + loads + post:
                        it = Item(x, deps=[prev])
                        items.append(it)
                        prev = it
            stream.append(marker("step", st["name"], st["tile"]))
            stream += pack_step(mf, fixed, items, stats=stats)
        self.over = stats
        stream += self.epilogue()
        self.validate(stream, allfr)
        fixes = []
        stream, nfix = fix_hazards(stream, fixes)
        self.fixes = fixes
        resolve_counts(stream)
        self.trace = stream
        stream = compress_loops(stream)
        tail = []
        for site, par in self.rare_sites.items():
            tail += [label(f"RARE_{site}"), I(f"s_call_b64 s[{sRET}:{sRET + 1}], RAREP_{par}"), I(f"s_branch RET_{site}")]
        for par in range(2):
            r, _ = fix_hazards(self.rare(par))
            tail += r
        return stream + tail

    def epilogue(self):
        o = []
        if self.opt.get("stamps"):
            o += self.stamp()
            o.append(I("s_waitcnt vmcnt(0)"))
            o += self.stamp()
            o.append(I(f"s_memrealtime s[{sST + 2 * self.nstamp}:{sST + 2 * self.nstamp + 1}]"))
            n = self.nstamp + 1
            o.append(I("s_waitcnt lgkmcnt(0)"))
            o.append(I("s_lshl_b32 s55, s2, 2"))
            o.append(I(f"s_add_u32 s55, s55, s{sWV}"))
            o.append(I("s_lshl_b32 s55, s55, 7"))
            o.append(I("s_add_u32 s55, s55, 44040192"))
            o.append(I(f"s_add_u32 s{sP}, s14, s55"))
            o.append(I(f"s_addc_u32 s{sP + 1}, s15, 0"))
            o.append(I(f"s_mov_b32 s{sP + 2}, 128"))
            o.append(I("v_mov_b32 v20, 0"))
            for k in range(n):
                o.append(I(f"v_mov_b32 v21, s{sST + 2 * k}"))
                o.append(I(f"buffer_store_dword v21, v20, {sr(sP)}, 0 offen offset:{4 * k}", vm_tag="dbg"))
        o.append(label("L_done"))
        o.append(I("s_endpgm"))
        return o

    def validate(self, stream, allfr):
        vm = []
        landed = set()
        visible = set()
        occupant = {}
        lastread = {}
        reads_left = {}
        for fr in allfr:
            reads_left[fr["step"]["tile"]] = reads_left.get(fr["step"]["tile"], 0) + 1
        waited = {}
        released = set()
        done = set()
        for c in stream:
            if c.kind == "vmem":
                vm.append(c.vm_tag)
                t = c.vm_tag
                if t in self.slot:
                    sl = self.slot[t]
                    o = occupant.get(sl)
                    if o is not None and o != t:
                        if o in reads_left:
                            assert o in released, ("slot overwritten before release", t, o)
                        else:
                            assert o in landed, ("dummy tile not landed before overwrite", t, o)
                    occupant[sl] = t
            elif c.kind == "wait" and c.vm_need is not None:
                idx = max(k for k in range(len(vm)) if vm[k] in c.vm_need)
                from collections import Counter
                cnt = Counter(vm[:idx + 1])
                for t, n in cnt.items():
                    if t in self.slot and n == 4:
                        landed.add(t)
            elif c.kind == "wait":
                for f in c.lg_need:
                    t = allfr[f]["step"]["tile"]
                    waited.setdefault(t, set()).add(f)
                    if len(waited[t]) == reads_left[t]:
                        done.add(t)
            elif c.mn == "s_barrier":
                visible |= landed
                released |= done
            elif c.kind == "ds":
                t = allfr[c.lg_tag]["step"]["tile"]
                assert t in visible, ("read before visible", t)
                assert occupant[self.slot[t]] == t, ("slot holds another tile", t, occupant[self.slot[t]])


def reduce_kernel():
    o = []
    A = o.append
    A(f".globl {RN}")
    A(".p2align 8")
    A(f".type {RN},@function")
    A(f"{RN}:")
    A("s_cmp_ge_u32 s2, 1344")
    A("s_cbranch_scc1 R_done")
    A("s_load_dwordx2 s[4:5], s[0:1], 40")
    A("s_load_dwordx2 s[6:7], s[0:1], 56")
    A("v_lshrrev_b32 v1, 6, v0")
    A("v_and_b32 v2, 63, v0")
    A("v_readfirstlane_b32 s16, v1")
    A("s_lshl_b32 s17, s2, 2")
    A("s_add_u32 s17, s17, s16")
    A("s_mul_hi_u32 s18, s17, 25565282")
    A("s_mul_i32 s19, s18, 168")
    A("s_sub_u32 s19, s17, s19")
    A("s_mul_hi_u32 s20, s19, 1431655766")
    A("s_mul_i32 s21, s20, 3")
    A("s_sub_u32 s21, s19, s21")
    A("s_mul_hi_u32 s22, s20, 306783379")
    A("s_mul_i32 s23, s22, 14")
    A("s_sub_u32 s23, s20, s23")
    A("s_mul_i32 s24, s18, 1376256")
    A("s_lshl_b32 s25, s19, 10")
    A("s_add_u32 s24, s24, s25")
    A("v_lshlrev_b32 v3, 4, v2")
    A("s_waitcnt lgkmcnt(0)")
    A("s_mov_b32 s8, s6")
    A("s_mov_b32 s9, s7")
    A("s_mov_b32 s10, 44040192")
    A("s_mov_b32 s11, 0x20000")
    A("s_mov_b32 s12, s4")
    A("s_mov_b32 s13, s5")
    A("s_mov_b32 s14, 5505024")
    A("s_mov_b32 s15, 0x20000")
    for p in range(8):
        A(f"buffer_load_dwordx4 v[{8 + 4 * p}:{11 + 4 * p}], v3, s[8:11], s24 offen")
        if p < 7:
            A("s_add_u32 s24, s24, 172032")
    A("s_mul_i32 s26, s18, 192")
    A("s_mul_i32 s27, s22, 48")
    A("s_add_u32 s26, s26, s27")
    A("s_lshl_b32 s27, s21, 4")
    A("s_add_u32 s26, s26, s27")
    A("s_mul_i32 s26, s26, 896")
    A("s_lshl_b32 s27, s23, 6")
    A("s_add_u32 s26, s26, s27")
    A("v_and_b32 v4, 15, v2")
    A("v_lshrrev_b32 v5, 4, v2")
    A("v_mul_u32_u24 v4, 896, v4")
    A("v_lshl_add_u32 v4, v5, 4, v4")
    for p in range(8):
        A(f"s_waitcnt vmcnt({7 - p})")
        for d in range(4):
            s = 8 + 4 * p + d
            if p == 0:
                A(f"v_lshlrev_b32 v{40 + 2 * d}, 16, v{s}")
                A(f"v_and_b32 v{41 + 2 * d}, 0xffff0000, v{s}")
            else:
                A(f"v_lshlrev_b32 v6, 16, v{s}")
                A(f"v_and_b32 v7, 0xffff0000, v{s}")
                A(f"v_add_f32 v{40 + 2 * d}, v{40 + 2 * d}, v6")
                A(f"v_add_f32 v{41 + 2 * d}, v{41 + 2 * d}, v7")
    for d in range(4):
        A(f"v_cvt_pk_bf16_f32 v{48 + d}, v{40 + 2 * d}, v{41 + 2 * d}")
    A("s_nop 1")
    A("v_permlane32_swap_b32 v48, v50")
    A("v_permlane32_swap_b32 v49, v51")
    A("s_nop 1")
    A("v_permlane16_swap_b32 v48, v50")
    A("v_permlane16_swap_b32 v49, v51")
    A("buffer_store_dwordx4 v[48:51], v4, s[12:15], s26 offen")
    A("R_done:")
    A("s_endpgm")
    return o


def descriptor(name, vg, acc_off, sg):
    return [f".amdhsa_kernel {name}", f"  .amdhsa_next_free_vgpr {vg}", f"  .amdhsa_next_free_sgpr {sg}",
            f"  .amdhsa_accum_offset {acc_off}", "  .amdhsa_group_segment_fixed_size 0", "  .amdhsa_kernarg_size 64",
            "  .amdhsa_user_sgpr_count 2", "  .amdhsa_user_sgpr_kernarg_segment_ptr 1",
            "  .amdhsa_system_sgpr_workgroup_id_x 1", "  .amdhsa_float_denorm_mode_32 3", ".end_amdhsa_kernel"]


def generate(opt):
    g = Gen(opt)
    body = g.build()
    L = ["; fused q-projection + attention + output projection (partials per head pair), then a reduction over head pairs",
         f"; @launch kernel={KN} grid=(256,1,1) block=(256,1,1) lds=163840",
         f"; @launch kernel={RN} grid=(1344,1,1) block=(256,1,1) lds=0",
         '.amdgcn_target "amdgcn-amd-amdhsa--gfx950"', ".text", f".globl {KN}", ".p2align 8", f".type {KN},@function",
         f"{KN}:"]
    for c in body:
        if c.kind == "mark":
            if c.mark == "label":
                L.append(c.text)
            elif c.mark[0] == "step":
                L.append(f"; ---- {c.mark[1]} tile {c.mark[2]}")
            continue
        L.append(c.render())
    L += reduce_kernel()
    L += ['.section .rodata,"a"', ".p2align 6"] + descriptor(KN, 512, 256, 102) + [".p2align 6"] + descriptor(RN, 56, 56, 32)
    return "\n".join(L) + "\n", g


if __name__ == "__main__":
    opt = {}
    out = sys.argv[1]
    for a in sys.argv[2:]:
        k, _, v = a.partition("=")
        opt[k] = int(v) if v else 1
    txt, g = generate(opt)
    open(out, "w").write(txt)
    print("lines", txt.count("\n"), "bytes", len(txt), "overflow slots", sum(g.over), "nop fixes", len(g.fixes))
    if opt.get("v"):
        print(g.over)
        for f in g.fixes:
            print(f)
```
